```python
import torch

def _softmax(x, axis=-1):
    return torch.softmax(x, dim=axis)
def _gelu(x):
    return torch.nn.functional.gelu(x, approximate="tanh")
def _silu(x):
    return torch.nn.functional.silu(x)
def _sigmoid(x):
    return torch.sigmoid(x)
def _layernorm(x, axis=-1, eps=1e-5):
    m = x.mean(dim=axis, keepdim=True)
    v = x.var(dim=axis, keepdim=True, unbiased=False)
    return (x - m) / torch.sqrt(v + eps)
def _scatter_add(tgt, idx, src, axis=0):
    return tgt.clone().index_add_(axis, idx, src)
def _segment_sum(src, seg, n):
    out = torch.zeros((n,) + src.shape[1:], dtype=src.dtype)
    return out.index_add_(0, seg, src)
def _pad(x, pw):
    flat = tuple(v for pair in reversed(pw) for v in pair)
    return torch.nn.functional.pad(x, flat)

kernel_name = 'interleave_layers__gqa_block_cached__glu_gated_swiglu__decode'

def setup_inputs():

    _w = (lambda a: (lambda t: t.to(torch.bfloat16) if t.is_floating_point() else t)(torch.as_tensor(a)))
    def _A_setup():
        B, Sq, D = 4, 1, 576
        Hq, Hkv, Sk, Dh = 32, 16, 4096, 128
        assert Hq % Hkv == 0, (Hq, Hkv)
        return {
            "x": _w((lambda *s: torch.randn(*s, dtype=torch.bfloat16) * 0.05)(B, Sq, D)),
            "k_cache": _w((lambda *s: torch.randn(*s, dtype=torch.bfloat16) * 0.8)(B, Hkv, Sk, Dh)),
            "v_cache": _w((lambda *s: torch.randn(*s, dtype=torch.bfloat16) * 0.8)(B, Hkv, Sk, Dh)),
            "wq": _w((lambda *s: torch.randn(*s, dtype=torch.bfloat16) * 0.8)(D, Hq * Dh) * (D ** -0.5)),
            "wo": _w((lambda *s: torch.randn(*s, dtype=torch.bfloat16) * 0.8)(Hq * Dh, D) * ((Hq * Dh) ** -0.5)),
        }
    _A_in = _A_setup()

    def _B_setup():
        B, S, D, F = 4, 1, 576, 4608
        return {
            "x": _w((lambda *s: torch.randn(*s, dtype=torch.bfloat16) * 0.05)(B, S, D)),
            "w1": _w((lambda *s: torch.randn(*s, dtype=torch.bfloat16) * 0.2)(D, F) * (2.0 / D) ** 0.5),
            "w3": _w((lambda *s: torch.randn(*s, dtype=torch.bfloat16) * 0.2)(D, F) * (2.0 / D) ** 0.5),
            "w2": _w((lambda *s: torch.randn(*s, dtype=torch.bfloat16) * 0.2)(F, D) * (2.0 / F) ** 0.5),
        }
    _B_in = _B_setup()

    return {
        "A_x": _A_in["x"],
        "A_k_cache": _A_in["k_cache"],
        "A_v_cache": _A_in["v_cache"],
        "A_wq": _A_in["wq"],
        "A_wo": _A_in["wo"],
        "B_x": _B_in["x"],
        "B_w1": _B_in["w1"],
        "B_w3": _B_in["w3"],
        "B_w2": _B_in["w2"],
    }

def reference(A_x, A_k_cache, A_v_cache, A_wq, A_wo, B_x, B_w1, B_w3, B_w2):
    def _A_ref(x, k_cache, v_cache, wq, wo):
        B, Sq, D = x.shape
        Hq, Dh = 32, 128
        Hkv = k_cache.shape[1]
        rep = Hq // Hkv
        q = (lambda x, *d: x.permute(*d))((x @ wq).reshape(B, Sq, Hq, Dh), 0, 2, 1, 3)
        k = (lambda x, n, axis: torch.repeat_interleave(x, n, dim=axis))(k_cache, rep, axis=1)
        v = (lambda x, n, axis: torch.repeat_interleave(x, n, dim=axis))(v_cache, rep, axis=1)
        scores = torch.einsum("bhqd,bhkd->bhqk", q, k) * (Dh ** -0.5)
        p = _softmax(scores, axis=-1)
        o = torch.einsum("bhqk,bhkd->bhqd", p, v)
        return (lambda x, *d: x.permute(*d))(o, 0, 2, 1, 3).reshape(B, Sq, Hq * Dh) @ wo

    def _B_ref(x, w1, w3, w2):
        gate = torch.einsum("bsd,df->bsf", x, w1)
        up = torch.einsum("bsd,df->bsf", x, w3)
        h = _silu(gate) * up
        out = torch.einsum("bsf,fd->bsd", h, w2)
        return out

    x = A_x
    x = x + _A_ref(_layernorm(x, axis=-1), A_k_cache, A_v_cache, A_wq, A_wo)
    x = x + _B_ref(_layernorm(x, axis=-1), B_w1, B_w3, B_w2)
    x = x + _A_ref(_layernorm(x, axis=-1), A_k_cache, A_v_cache, A_wq, A_wo)
    x = x + _B_ref(_layernorm(x, axis=-1), B_w1, B_w3, B_w2)
    return x
```

```python
import re
REG = re.compile(r'^(-|\|)?(?:abs\()?([vas])(?:(\d+)|\[(\d+):(\d+)\])\)?\|?$')
def regs_of(tok):
    tok = tok.strip()
    if tok in ("vcc",): return {("s", 106), ("s", 107)}
    if tok == "vcc_lo": return {("s", 106)}
    if tok == "vcc_hi": return {("s", 107)}
    if tok == "exec": return {("s", 126), ("s", 127)}
    if tok == "exec_lo": return {("s", 126)}
    if tok == "exec_hi": return {("s", 127)}
    if tok == "m0": return {("s", 124)}
    m = REG.match(tok)
    if not m: return set()
    k = m.group(2)
    if m.group(3) is not None: lo = hi = int(m.group(3))
    else: lo, hi = int(m.group(4)), int(m.group(5))
    return {(k, i) for i in range(lo, hi + 1)}
TRANS = ("v_exp_f32", "v_log_f32", "v_rcp_f32", "v_rsq_f32", "v_sqrt_f32", "v_sin_f32", "v_cos_f32")
def split_ops(rest):
    parts = []; depth = 0; cur = ""
    for ch in rest:
        if ch == "[": depth += 1
        if ch == "]": depth -= 1
        if ch == "," and depth == 0: parts.append(cur.strip()); cur = ""
        else: cur += ch
    parts.append(cur.strip())
    last = parts[-1].split()
    mods = last[1:] if last else []
    if last: parts[-1] = last[0]
    return parts, mods
class I:
    def __init__(s, text):
        s.text = text
        t = text.split(";")[0].strip()
        s.op = t.split()[0]
        rest = t[len(s.op):].strip()
        s.ops, s.mods = split_ops(rest) if rest else ([], [])
        op = s.op
        s.kind = "other"; s.w = set(); s.r = set(); s.c = set(); s.ab = set()
        R = [regs_of(o) for o in s.ops]
        if op.startswith("v_mfma") or op.startswith("v_smfmac"):
            s.kind = "mfma"; s.w = R[0]
            if op.startswith("v_smfmac"): s.c = R[0]; s.ab = R[1] | R[2] | R[3]
            else: s.c = R[3]; s.ab = R[1] | R[2]
            s.r = s.c | s.ab
        elif op.startswith("v_"):
            s.kind = "valu"
            s.dpp = any(m.startswith(("row_", "quad_perm", "wave_")) for m in s.mods)
            s.trans = op.startswith(TRANS)
            s.perm = op.startswith("v_permlane")
            s.rdl = op.startswith(("v_readfirstlane", "v_readlane"))
            if s.perm: s.w = R[0] | R[1]; s.r = R[0] | R[1]
            elif op.startswith(("v_add_co", "v_sub_co", "v_addc_co")): s.w = R[0] | R[1]; s.r = set().union(*R[2:])
            else:
                s.w = R[0]; s.r = set().union(*R[1:]) if len(R) > 1 else set()
                if op.startswith(("v_fmac", "v_dot2c", "v_writelane")) or s.dpp: s.r |= R[0]
                if op.startswith("v_cndmask") and len(R) == 3: s.r |= regs_of("vcc")
        elif op.startswith(("buffer_", "global_", "ds_")):
            s.kind = "mem"
            s.lds_dma = ("lds" in s.mods) or op.startswith("global_load_lds")
            isload = ("load" in op or "read" in op) and not s.lds_dma
            if isload: s.w = R[0]; s.r = set().union(*R[1:])
            else: s.r = set().union(*R)
            s.wide_store = ("store" in op) and op.endswith(("x3", "x4"))
            s.data = set()
            if s.wide_store: s.data = R[0] if op.startswith("buffer_") else R[1]
        elif op.startswith("s_"):
            s.kind = "salu"
            if op.startswith(("s_cbranch", "s_branch", "s_endpgm", "s_setpc")): s.kind = "branch"
            elif op.startswith(("s_nop", "s_waitcnt", "s_barrier", "s_sleep", "s_cmp", "s_setprio")): pass
            elif R: s.w = R[0]
        s.states = 1
        if op == "s_nop": s.states = int(s.ops[0], 0) + 1
def vg(x): return {r for r in x if r[0] in "va"}
def sg(x): return {r for r in x if r[0] == "s"}
PASS = 4
def need(p, c):
    n = 0
    if p.kind == "valu":
        pw = vg(p.w); ps = sg(p.w)
        if c.kind == "mfma" and pw & c.r: n = max(n, 2)
        if c.kind == "valu":
            if c.dpp and pw & vg(c.r): n = max(n, 2)
            if c.perm and pw & vg(c.r): n = max(n, 2)
            if c.rdl and pw & vg(c.r): n = max(n, 1)
            if p.trans and not c.trans and pw & vg(c.r): n = max(n, 1)
            if ps & sg(c.r): n = max(n, 4 if c.op.startswith(("v_readlane", "v_writelane")) else 2)
        if c.kind == "mem" and ps & sg(c.r): n = max(n, 5)
        if c.kind == "mem" and p.trans and pw & vg(c.r): n = max(n, 1)
    if p.kind == "mfma":
        if c.kind == "mfma":
            if p.w & c.ab: n = max(n, 8)
            if p.w & c.c and p.w != c.c: n = max(n, 6)
            if p.w & c.w and not (p.w & c.c): n = max(n, 6)
        if c.kind == "valu":
            if p.w & (c.r | c.w): n = max(n, 8)
            if p.c & c.w: n = max(n, 3)
        if c.kind == "mem" and p.w & (c.r | c.w): n = max(n, 8)
    if p.kind == "salu" and ("s", 124) in p.w and c.kind == "mem" and c.lds_dma: n = max(n, 1)
    if p.kind == "mem" and getattr(p, "wide_store", False):
        if p.data & vg(c.w): n = max(n, 2)
    return n
def worst(p):
    if p.kind == "mfma": return 8
    if p.kind == "valu":
        if sg(p.w) and sg(p.w) <= {("s", 106), ("s", 107)}: return 0
        return 5 if sg(p.w) else 2
    if p.kind == "salu" and ("s", 124) in p.w: return 1
    if p.kind == "mem" and getattr(p, "wide_store", False): return 2
    return 0
class Asm:
    def __init__(s): s.L = []
    def e(s, t):
        for line in t.split("\n"):
            if line.strip(): s.L.append(line.strip())
    def finish(s):
        out = []; hist = []
        def pad(n):
            while n > 0:
                k = min(n, 16); out.append(f"s_nop {k-1}");
                for h in hist: h[1] += k
                n -= k
        for line in s.L:
            t = line.split(";")[0].strip()
            if not t or t.startswith("."):
                out.append(line); continue
            if t.endswith(":"):
                pad(max([worst(p) - a for p, a in hist] + [0])); hist = []
                out.append(line); continue
            c = I(line)
            if c.kind == "branch":
                pad(max([worst(p) - a - 1 for p, a in hist] + [0]))
            else:
                pad(max([need(p, c) - a for p, a in hist] + [0]))
            out.append(line)
            for h in hist: h[1] += c.states
            hist = [h for h in hist if h[1] < 12]
            hist.append([c, 0])
        return "\n".join(out) + "\n"
```

```python
import sys
sys.path.insert(0, "work")
from asmlib import Asm
NAME = "interleave_layers__gqa_block_cached__glu_gated_swiglu__decode_kernel"

GB = 262144
OFF_OP = 0
OFF_OS = 65536
OFF_X = 66560
OFF_XS = 80384
OFF_GU = 86528
OFF_QP = 197120
assert OFF_QP + 24576 <= GB
CROSS = 8 * GB
OFF_P1 = CROSS
OFF_P2 = CROSS + 2 * 147456
CROSS_SZ = 786432
assert OFF_P2 + 2 * 221184 <= CROSS + CROSS_SZ
OFF_STAMP = CROSS + CROSS_SZ
WS_USED = OFF_STAMP + 1024 * 256
L_STG = 131072
L_SCR = L_STG + 24576
L_OSC = L_SCR
L_ST = L_SCR + 4096
L_OB = L_SCR + 4160
L_HB = L_OB + 2176
L_QS = L_OB
assert L_HB + 1664 <= 163840 and L_QS + 2304 <= 163840
SCALE = 0.12751743
LOG2E = 1.4426950408889634
import struct
def f2u(x): return "0x%08x" % struct.unpack("<I", struct.pack("<f", x))[0]

sW, sX, sJ, sP, sSLOW, sBUD = 3, 4, 5, 6, 7, 8
sT0, sT1, sT2, sT3 = 9, 10, 11, 12
sG = 13
sQK = 14
sM4, sM16 = 30, 32
sC = 34
sREG = 35
rK, rV, rWS, rWQ, rWO, rW1, rW3, rW2, rX0, rOUT, rDBG = 36, 40, 44, 48, 52, 56, 60, 64, 68, 72, 76
sPT = 80
sHL, sB, sSP, sCG, sKQ = 80, 81, 82, 83, 84
sOA, sOB, sOC, sOD = 85, 86, 87, 88
sXI = 89
sTM = 96
def srd(r): return f"s[{r}:{r+3}]"
vL, vTR, vVA, vIDX, vT0, vT1, vT2, vST = 0, 1, 2, 3, 4, 5, 6, 7
vWO = 8
vRES = 8
vO = 40
vR = 72
vV1 = 128
def vr(a, n): return f"v[{a}:{a+n-1}]"
def ar(a, n): return f"a[{a}:{a+n-1}]"
DPPF = "row_mask:0xf bank_mask:0xf"

def gen(KPOL="nt", WPOL="", prof=False, force_slow=False, stop_after=None):
    A = Asm(); e = A.e
    slow_blocks = []
    lab = [0]
    def newl(p="L"):
        lab[0] += 1; return f"{p}{lab[0]}"
    nstamp = [0]
    def stamp(dyn=False):
        if not prof: return
        k = nstamp[0]; nstamp[0] += 1
        e(f"s_memrealtime s[{sTM}:{sTM+1}]"); e("s_waitcnt lgkmcnt(0)")
        if dyn:
            e(f"s_lshl_b32 s{sTM+1}, s{sP}, 4"); e(f"s_add_u32 s{sTM+1}, s{sTM+1}, {k}")
            e(f"s_mov_b32 m0, s{sTM+1}")
            e(f"v_writelane_b32 v{vST}, s{sTM}, m0")
        else:
            e(f"v_writelane_b32 v{vST}, s{sTM}, {k}")
    def publish_intra(stores):
        ls, lb = newl("Lslow"), newl("Lback")
        e(f"s_cmp_lg_u32 s{sSLOW}, 0"); e(f"s_cbranch_scc1 {ls}")
        for s_ in stores: e(s_)
        e(f"{lb}:")
        slow_blocks.append((ls, lb, stores))
    def poll(loads, regs, pre=None):
        lp, lo = newl("Lp"), newl("Lo")
        e(f"{lp}:")
        for l in loads: e(l)
        e(f"s_add_u32 s{sBUD}, s{sBUD}, 1"); e(f"s_cmp_gt_u32 s{sBUD}, 200000")
        n = len(regs); first = True
        for i, (a, c) in enumerate(regs):
            e(f"s_waitcnt vmcnt({n-1-i})")
            rs = list(range(a, a + c))
            if first:
                e(f"v_max_u32 v{vT0}, v{rs[0]}, v{rs[1]}"); rs = rs[2:]; first = False
            while len(rs) >= 2:
                e(f"v_max3_u32 v{vT0}, v{vT0}, v{rs[0]}, v{rs[1]}"); rs = rs[2:]
            if rs: e(f"v_max_u32 v{vT0}, v{vT0}, v{rs[0]}")
        e(f"v_cmp_eq_u32 vcc, -1, v{vT0}")
        e(f"s_cbranch_scc1 {lo}")
        e(f"s_cbranch_vccnz {lp}")
        e(f"{lo}:")
    def mksrd(r, lo, size, add=None):
        if add is None:
            e(f"s_mov_b32 s{r}, s{lo}"); e(f"s_and_b32 s{r+1}, s{lo+1}, 0xffff")
        else:
            e(f"s_add_u32 s{r}, s{lo}, s{add}"); e(f"s_addc_u32 s{r+1}, s{lo+1}, 0"); e(f"s_and_b32 s{r+1}, s{r+1}, 0xffff")
        e(f"s_mov_b32 s{r+2}, {size}"); e(f"s_mov_b32 s{r+3}, 0x20000")
    def rows_sum(v, t):
        e(f"v_mov_b32 v{t}, v{v}"); e(f"v_permlane32_swap_b32 v{v}, v{t}"); e(f"v_add_f32 v{v}, v{v}, v{t}")
        e(f"v_mov_b32 v{t}, v{v}"); e(f"v_permlane16_swap_b32 v{v}, v{t}"); e(f"v_add_f32 v{v}, v{v}, v{t}")

    hdr = open("interleave_layers__gqa_block_cached__glu_gated_swiglu__decode.s.ref").read().split("; Override launch")[0]
    pre = hdr + "; @launch grid=(256,1,1) block=(256,1,1) lds=163840\n"
    e('.amdgcn_target "amdgcn-amd-amdhsa--gfx950"'); e(".text"); e(f".globl {NAME}"); e(".p2align 8")
    e(f".type {NAME},@function"); e(f"{NAME}:")
    e("s_cmp_ge_u32 s2, 256"); e("s_cbranch_scc1 L_end")
    e(f"s_load_dwordx16 s[{sPT}:{sPT+15}], s[0:1], 0")
    e(f"s_load_dwordx8 s[20:27], s[0:1], 64")
    e("s_getpc_b64 s[28:29]")
    e("L_pc0:")
    e(f"v_lshlrev_b32 v{vT0}, 7, v0")
    e(f"v_min_u32 v{vT0}, L_pair-L_pc0, v{vT0}")
    e(f"global_load_dword v126, v{vT0}, s[28:29]")
    e("v_lshrrev_b32 v1, 6, v0"); e(f"v_and_b32 v{vL}, 63, v0")
    e(f"v_readfirstlane_b32 s{sW}, v1")
    e(f"s_and_b32 s{sX}, s2, 7"); e(f"s_lshr_b32 s{sJ}, s2, 3")
    e(f"s_lshr_b32 s{sT0}, s{sJ}, 4")
    e(f"s_bfe_u32 s{sT1}, s{sJ}, 0x20002")
    e(f"s_lshl_b32 s{sT2}, s{sT1}, 4"); e(f"s_add_u32 s{sT2}, s{sT2}, s{sT0}")
    e(f"s_lshl_b32 s{sT3}, s{sX}, 1"); e(f"s_add_u32 s{sT2}, s{sT2}, s{sT3}"); e(f"s_lshl_b32 s{sT2}, s{sT2}, 2")
    e(f"s_and_b32 s{sT3}, s{sJ}, 3"); e(f"s_add_u32 s{sT2}, s{sT2}, s{sT3}"); e(f"s_lshl_b32 s{sT2}, s{sT2}, 2")
    e(f"s_add_u32 s{sT2}, s{sT2}, s{sW}"); e(f"s_lshl_b32 s{sT2}, s{sT2}, 16")
    g, c, rp, cp = 100, 101, 102, 103
    vKO, vLIN = 104, 105
    e(f"v_lshrrev_b32 v{g}, 4, v{vL}"); e(f"v_and_b32 v{c}, 15, v{vL}")
    e(f"v_lshlrev_b32 v{vKO}, 8, v{c}"); e(f"v_lshl_add_u32 v{vKO}, v{g}, 4, v{vKO}")
    e(f"v_lshlrev_b32 v{vLIN}, 4, v{vL}")
    e("s_waitcnt lgkmcnt(0)")
    mksrd(rK, sPT + 2, 65536, sT2)
    def kload(lo, hi):
        for i in range(lo, hi):
            t, j = divmod(i, 4)
            if j == 0: e(f"s_movk_i32 s{sT0}, {t*4096}" if t*4096 < 32768 else f"s_mov_b32 s{sT0}, {t*4096}")
            e(f"buffer_load_dwordx4 {ar(i*4,4)}, v{vKO}, {srd(rK)}, s{sT0} offen offset:{j*64} {KPOL}")
    if prof:
        e(f"v_mov_b32 v{vST}, 0")
    stamp()
    kload(0, 16)
    mksrd(rV, sPT + 4, 65536, sT2)
    mksrd(rX0, sPT + 0, 4608); mksrd(rWQ, sPT + 6, 4718592); mksrd(rWO, sPT + 8, 4718592)
    mksrd(rW1, sPT + 12, 5308416); mksrd(rW3, sPT + 14, 5308416)
    mksrd(rW2, 20, 5308416); mksrd(rOUT, 22, 4608); mksrd(rDBG, 24, 256); mksrd(rWS, 26, WS_USED)
    e(f"s_lshr_b32 s{sHL}, s{sJ}, 4"); e(f"s_bfe_u32 s{sB}, s{sJ}, 0x20002"); e(f"s_and_b32 s{sSP}, s{sJ}, 3")
    e(f"s_mul_i32 s{sKQ}, s{sJ}, 29"); e(f"s_lshr_b32 s{sKQ}, s{sKQ}, 8")
    e(f"s_mul_i32 s{sCG}, s{sKQ}, 9"); e(f"s_sub_u32 s{sCG}, s{sJ}, s{sCG}")
    e(f"s_lshl_b32 s{sG}, s{sX}, 18"); e(f"s_lshl_b32 s{sREG}, s{sW}, 15")
    e(f"s_mov_b32 s{sP}, 0"); e(f"s_mov_b32 s{sBUD}, 0"); e(f"s_mov_b32 s{sC}, {f2u(SCALE)}"); e(f"s_mov_b32 s{sXI}, 0")
    e(f"s_mov_b32 s{sM4}, 0x000f000f"); e(f"s_mov_b32 s{sM4+1}, 0x000f000f"); e(f"s_mov_b32 s{sM16}, 0xffff"); e(f"s_mov_b32 s{sM16+1}, 0")
    e(f"s_mov_b32 s{sQK}, 0x00030003"); e(f"s_mov_b32 s{sQK+1}, 0x00030003")
    for t in range(1, 8): e(f"s_lshl_b64 s[{sQK+2*t}:{sQK+2*t+1}], s[{sQK}:{sQK+1}], {2*t}")
    e(f"v_lshrrev_b32 v{rp}, 2, v{c}"); e(f"v_and_b32 v{cp}, 3, v{c}")
    vX = 106
    e(f"v_lshlrev_b32 v{vT0}, 2, v{vL}"); e(f"s_mul_i32 s{sT0}, s{sB}, 1152"); e(f"v_mov_b32 v{vX+4}, 0")
    for i in range(4): e(f"buffer_load_dword v{vX+i}, v{vT0}, {srd(rX0)}, s{sT0} offen offset:{i*256}")
    e("s_mov_b32 exec_hi, 0"); e(f"buffer_load_dword v{vX+4}, v{vT0}, {srd(rX0)}, s{sT0} offen offset:1024"); e("s_mov_b32 exec_hi, -1")
    for i in range(4): e(f"v_mov_b32 v{112+i}, -1")
    e(f"s_lshl_b32 s{sT0}, s{sJ}, 2"); e(f"s_add_u32 s{sT0}, s{sT0}, s{sW}"); e(f"s_lshl_b32 s{sT0}, s{sT0}, 11"); e(f"s_add_u32 s{sT0}, s{sT0}, s{sG}")
    e(f"buffer_store_dwordx4 v[112:115], v{vLIN}, {srd(rWS)}, s{sT0} offen sc1")
    e(f"buffer_store_dwordx4 v[112:115], v{vLIN}, {srd(rWS)}, s{sT0} offen offset:1024 sc1")
    e(f"s_lshl_b32 s{sT0}, s2, 2"); e(f"s_add_u32 s{sT0}, s{sT0}, s{sW}"); e(f"s_mul_i32 s{sT0}, s{sT0}, 768"); e(f"s_add_u32 s{sT0}, s{sT0}, {CROSS}")
    e("s_mov_b32 exec_hi, 0xffff"); e(f"buffer_store_dwordx4 v[112:115], v{vLIN}, {srd(rWS)}, s{sT0} offen sc1"); e("s_mov_b32 exec_hi, -1")
    l = newl()
    e(f"s_cmp_lg_u32 s{sW}, 0"); e(f"s_cbranch_scc1 {l}")
    e(f"s_getreg_b32 s{sT0}, hwreg(HW_REG_XCC_ID, 0, 4)"); e(f"s_lshl_b32 s{sT0}, 1, s{sT0}")
    e(f"v_mov_b32 v{vT1}, s{sT0}"); e(f"s_lshl_b32 s{sT0}, s{sX}, 2"); e(f"s_add_u32 s{sT0}, s{sT0}, 4"); e(f"v_mov_b32 v{vT2}, 0")
    e("s_mov_b64 exec, 1"); e(f"buffer_atomic_or v{vT1}, v{vT2}, {srd(rDBG)}, s{sT0} offen sc1"); e("s_mov_b64 exec, -1")
    e(f"{l}:")
    l = newl()
    e(f"s_cmp_lt_u32 s{sJ}, 23"); e(f"s_cbranch_scc1 {l}")
    e(f"v_mul_u32_u24 v{vT1}, 1152, v{rp}"); e(f"v_lshl_add_u32 v{vT1}, v{cp}, 3, v{vT1}"); e(f"v_lshl_add_u32 v{vT1}, v{g}, 1, v{vT1}")
    e(f"s_sub_u32 s{sT0}, s{sJ}, 23"); e(f"s_lshl_b32 s{sT0}, s{sT0}, 2"); e(f"s_add_u32 s{sT0}, s{sT0}, s{sW}"); e(f"s_lshl_b32 s{sT0}, s{sT0}, 5")
    e(f"buffer_load_ushort v{vRES}, v{vT1}, {srd(rX0)}, s{sT0} offen")
    e(f"{l}:")
    l = newl()
    e(f"s_cmp_ge_u32 s{sJ}, 18"); e(f"s_cbranch_scc1 {l}")
    e(f"v_lshrrev_b32 v{vT1}, 1, v{vL}"); e(f"v_mul_u32_u24 v{vT1}, 1152, v{vT1}"); e(f"v_and_b32 v{vT2}, 1, v{vL}"); e(f"v_lshl_add_u32 v{vT1}, v{vT2}, 4, v{vT1}")
    e(f"s_lshl_b32 s{sT0}, s{sX}, 1"); e(f"s_add_u32 s{sT0}, s{sT0}, s{sKQ}"); e(f"s_mul_i32 s{sT0}, s{sT0}, {256*1152}")
    e(f"s_lshl_b32 s{sT1}, s{sCG}, 2"); e(f"s_add_u32 s{sT1}, s{sT1}, s{sW}"); e(f"s_lshl_b32 s{sT1}, s{sT1}, 5"); e(f"s_add_u32 s{sT0}, s{sT0}, s{sT1}")
    e(f"s_add_u32 s{sT1}, s{sREG}, 24576")
    for i in range(8):
        e(f"s_mov_b32 m0, s{sT1}")
        e(f"buffer_load_dwordx4 v{vT1}, {srd(rWO)}, s{sT0} offen {WPOL} lds")
        if i < 7: e(f"s_add_u32 s{sT0}, s{sT0}, {32*1152}"); e(f"s_add_u32 s{sT1}, s{sT1}, 1024")
    e(f"{l}:")
    def wsrc(dst, pitch, t1, t2):
        e(f"v_lshrrev_b32 v{t1}, 3, v{vL}"); e(f"v_and_b32 v{t2}, 2, v{t1}"); e(f"v_xor_b32 v{t2}, v{t2}, v{vL}"); e(f"v_and_b32 v{t2}, 7, v{t2}")
        e(f"v_mul_u32_u24 v{dst}, {pitch}, v{t1}"); e(f"v_lshl_add_u32 v{dst}, v{t2}, 4, v{dst}"); e(f"v_xor_b32 v{dst+1}, 64, v{dst}")
    vWS = 116
    wsrc(vWS, 8192, vT1, vT2)
    e(f"s_lshl_b32 s{sOA}, s{sX}, 10"); e(f"s_lshl_b32 s{sT0}, s{sHL}, 9"); e(f"s_add_u32 s{sOA}, s{sOA}, s{sT0}"); e(f"s_lshl_b32 s{sT0}, s{sW}, 7"); e(f"s_add_u32 s{sOA}, s{sOA}, s{sT0}")
    def wq_round_issue():
        e(f"s_mov_b32 s{sT1}, s{sREG}")
        for i in range(24):
            e(f"s_mov_b32 m0, s{sT1}")
            e(f"buffer_load_dwordx4 v{vWS + (i&1)}, {srd(rWQ)}, s{sOA} offen {WPOL} lds")
            e(f"s_add_u32 s{sOA}, s{sOA}, 65536"); e(f"s_add_u32 s{sT1}, s{sT1}, 1024")
    wq_round_issue()
    kload(16, 32)
    e(f"v_lshl_add_u32 v{vTR}, v{g}, 3, v{rp}"); e(f"v_lshlrev_b32 v{vTR}, 7, v{vTR}")
    e(f"v_lshrrev_b32 v{vT1}, 1, v{rp}"); e(f"v_and_b32 v{vT2}, 1, v{g}"); e(f"v_lshl_add_u32 v{vT1}, v{vT2}, 1, v{vT1}")
    e(f"v_lshl_add_u32 v{vTR}, v{vT1}, 5, v{vTR}"); e(f"v_lshl_add_u32 v{vTR}, v{cp}, 3, v{vTR}")
    e(f"v_lshrrev_b32 v{vT1}, 1, v{rp}"); e(f"v_lshl_add_u32 v{vT1}, v{vT1}, 1, v{vT2}")
    e(f"v_and_b32 v{vT2}, 1, v{rp}")
    e(f"v_lshl_add_u32 v{vVA}, v{vT1}, 4, v{vT2}"); e(f"v_lshrrev_b32 v{vT0}, 1, v{g}"); e(f"v_lshl_add_u32 v{vVA}, v{vT0}, 2, v{vVA}")
    e(f"v_lshlrev_b32 v{vVA}, 8, v{vVA}"); e(f"v_lshl_add_u32 v{vT1}, v{vT1}, 1, v{vT2}")
    e(f"v_lshl_add_u32 v{vVA}, v{vT1}, 5, v{vVA}"); e(f"v_lshl_add_u32 v{vVA}, v{cp}, 3, v{vVA}"); e(f"v_add_u32 v{vVA}, s{sREG}, v{vVA}")
    e(f"v_and_b32 v{vT1}, 2, v{vL}"); e(f"v_cmp_eq_u32 vcc, 0, v{vT1}"); e(f"v_mov_b32 v{vT1}, 0xeeee"); e(f"v_mov_b32 v{vT2}, 0x4444")
    e(f"v_cndmask_b32 v{vIDX}, v{vT1}, v{vT2}, vcc")
    vVS = 120
    e(f"v_and_b32 v{vT1}, 1, v{g}"); e(f"v_lshlrev_b32 v{vT1}, 1, v{vT1}"); e(f"v_xor_b32 v{vT1}, v{vT1}, v{c}")
    e(f"v_lshlrev_b32 v{vT1}, 4, v{vT1}"); e(f"v_lshl_add_u32 v{vVS}, v{g}, 8, v{vT1}")
    for m in range(1, 4): e(f"v_xor_b32 v{vVS+m}, {64*m}, v{vVS}")
    e("s_waitcnt vmcnt(16)")
    stamp()
    e("s_barrier")
    l = newl()
    e(f"s_cmp_lg_u32 s{sW}, 0"); e(f"s_cbranch_scc1 {l}")
    e(f"v_mov_b32 v{vT1}, 1"); e(f"v_mov_b32 v{vT2}, 0")
    e("s_mov_b64 exec, 1"); e(f"buffer_atomic_add v{vT1}, v{vT2}, {srd(rDBG)}, 0 offen sc1"); e("s_mov_b64 exec, -1")
    e(f"{l}:")
    vU = 72
    for i in range(5):
        e(f"v_lshlrev_b32 v{vU+2*i}, 16, v{vX+i}"); e(f"v_and_b32 v{vU+2*i+1}, 0xffff0000, v{vX+i}")
    e(f"v_add_f32 v{vT1}, v{vU}, v{vU+1}"); e(f"v_mul_f32 v{vT2}, v{vU}, v{vU}"); e(f"v_fmac_f32 v{vT2}, v{vU+1}, v{vU+1}")
    for i in range(2, 10):
        e(f"v_add_f32 v{vT1}, v{vT1}, v{vU+i}"); e(f"v_fmac_f32 v{vT2}, v{vU+i}, v{vU+i}")
    for n in (8, 4, 2, 1):
        e(f"v_add_f32_dpp v{vT1}, v{vT1}, v{vT1} row_ror:{n} {DPPF}"); e(f"v_add_f32_dpp v{vT2}, v{vT2}, v{vT2} row_ror:{n} {DPPF}")
    rows_sum(vT1, vT0); rows_sum(vT2, vT0)
    def stats_to_mu_rstd(s1, s2, t):
        e(f"v_mul_f32 v{s1}, {f2u(1/576)}, v{s1}"); e(f"v_mul_f32 v{s2}, {f2u(1/576)}, v{s2}")
        e(f"v_fma_f32 v{s2}, -v{s1}, v{s1}, v{s2}"); e(f"v_max_f32 v{s2}, 0, v{s2}"); e(f"v_add_f32 v{s2}, {f2u(1e-5)}, v{s2}")
        e(f"v_rsq_f32 v{s2}, v{s2}")
    stats_to_mu_rstd(vT1, vT2, vT0)
    for i in range(10):
        e(f"v_sub_f32 v{vU+i}, v{vU+i}, v{vT1}"); e(f"v_mul_f32 v{vU+i}, v{vU+i}, v{vT2}")
    e(f"v_lshlrev_b32 v{vT0}, 2, v{vL}"); e(f"v_add_u32 v{vT0}, {L_OSC}, v{vT0}")
    for i in range(5):
        e(f"v_cvt_pk_bf16_f32 v{vU+2*i}, v{vU+2*i}, v{vU+2*i+1}")
    for i in range(5):
        e(f"ds_write_b32 v{vT0}, v{vU+2*i} offset:{i*256}")
    l, l2 = newl(), newl()
    e(f"s_cmp_ge_u32 s{sJ}, 18"); e(f"s_cbranch_scc1 {l}")
    e(f"v_lshl_add_u32 v{vT1}, v{g}, 3, v{rp}"); e(f"v_lshlrev_b32 v{vT1}, 5, v{vT1}"); e(f"v_lshl_add_u32 v{vT1}, v{cp}, 3, v{vT1}")
    e(f"v_add_u32 v{vT1}, s{sREG}, v{vT1}")
    for s_ in range(8):
        for hf in range(2):
            e(f"ds_read_b64_tr_b16 {vr(vWO+4*s_+2*hf,2)}, v{vT1} offset:{24576 + s_*1024 + hf*128}")
    e(f"s_branch {l2}")
    e(f"{l}:")
    e(f"v_lshlrev_b32 v{vRES}, 16, v{vRES}")
    e(f"{l2}:")
    vQD = 40
    vTA = 60
    for t in range(4):
        e(f"v_xor_b32 v{vTA+t}, {32*t}, v{vTR}"); e(f"v_add_u32 v{vTA+t}, s{sREG}, v{vTA+t}")
    vXA = 64
    e(f"v_lshlrev_b32 v{vXA}, 4, v{g}"); e(f"v_add_u32 v{vXA}, {L_OSC}, v{vXA}")
    def wq_round_compute(rnd):
        e("s_waitcnt lgkmcnt(0)")
        for s_ in range(6):
            e(f"ds_read_b128 {vr(224+4*s_,4)}, v{vXA} offset:{(192*rnd+32*s_)*2}")
            for t in range(4):
                for hf in range(2):
                    e(f"ds_read_b64_tr_b16 {vr(128+(s_*4+t)*4+2*hf,2)}, v{vTA+t} offset:{s_*4096+hf*512}")
        e("s_waitcnt lgkmcnt(0)")
        for s_ in range(6):
            for t in range(4):
                cc = "0" if (rnd == 0 and s_ == 0) else vr(vQD+4*t,4)
                e(f"v_mfma_f32_16x16x32_bf16 {vr(vQD+4*t,4)}, {vr(128+(s_*4+t)*4,4)}, {vr(224+4*s_,4)}, {cc}")
    wq_round_compute(0)
    wq_round_issue(); kload(32, 48); e("s_waitcnt vmcnt(16)"); wq_round_compute(1)
    wq_round_issue(); kload(48, 64); e("s_waitcnt vmcnt(16)"); wq_round_compute(2)
    def vload(J):
        for i in range(16):
            t, j = divmod(i, 4)
            if j == 0:
                e(f"s_add_u32 s{sT1}, s{sREG}, {(J&1)*16384 + t*4096}"); e(f"s_mov_b32 m0, s{sT1}"); e(f"s_mov_b32 s{sT0}, {J*16384 + t*4096}")
            e(f"buffer_load_dwordx4 v{vVS+t}, {srd(rV)}, s{sT0} offen offset:{j*1024} {KPOL} lds")
    vload(0); vload(1)
    stamp()
    e(f"s_lshr_b32 s{sT0}, s{sW}, 1"); e(f"s_mul_i32 s{sT0}, s{sT0}, 288"); e(f"s_and_b32 s{sT1}, s{sW}, 1"); e(f"s_lshl_b32 s{sT1}, s{sT1}, 7")
    e(f"s_add_u32 s{sT0}, s{sT0}, s{sT1}"); e(f"s_add_u32 s{sT0}, s{sT0}, {L_QS}")
    e(f"v_lshlrev_b32 v{vT1}, 3, v{g}"); e(f"v_add_u32 v{vT1}, s{sT0}, v{vT1}")
    for t in range(4):
        e(f"v_cvt_pk_bf16_f32 v{vQD+4*t}, v{vQD+4*t}, v{vQD+4*t+1}"); e(f"v_cvt_pk_bf16_f32 v{vQD+4*t+1}, v{vQD+4*t+2}, v{vQD+4*t+3}")
    for t in range(4):
        e(f"ds_write_b64 v{vT1}, {vr(vQD+4*t,2)} offset:{32*t}")
    def v_operand_reads(dst, J, d, areg):
        for m4 in range(4):
            e(f"ds_read_b64_tr_b16 {vr(dst+2*m4,2)}, v{areg} offset:{(J&1)*16384 + (8*(m4>>1)+2*(m4&1))*256}")
    vVD = 72
    for d in range(8): e(f"v_xor_b32 v{vVD+d}, {32*d}, v{vVA}")
    e("s_waitcnt vmcnt(16)")
    for d in range(8): v_operand_reads(vV1 + d*8, 0, d, vVD + d)
    e("s_waitcnt lgkmcnt(0)")
    vload(2)
    e("s_waitcnt vmcnt(16)")
    for d in range(8): v_operand_reads(vV1 + 64 + d*8, 1, d, vVD + d)
    vCK = 124
    e(f"v_lshlrev_b32 v{vT1}, 2, v{vL}")
    e(f"buffer_load_dword v{vCK}, v{vT1}, {srd(rDBG)}, 0 offen sc1")
    e("s_getpc_b64 s[90:91]")
    e("L_pc1:")
    e(f"v_lshlrev_b32 v{vT2}, 7, v{vL}"); e(f"s_lshl_b32 s{sT0}, s{sW}, 13"); e(f"v_add_u32 v{vT2}, s{sT0}, v{vT2}")
    e(f"v_min_u32 v{vT2}, L_end-L_pc1, v{vT2}")
    e(f"global_load_dword v{vCK+1}, v{vT2}, s[90:91]")
    e("s_waitcnt lgkmcnt(0)")
    vload(3)
    stamp()
    e("s_barrier")
    vQA = vT2
    def q_addr(base_sgpr_or_const):
        e(f"v_and_b32 v{vT1}, 1, v{vL}"); e(f"v_mul_u32_u24 v{vT1}, 288, v{vT1}"); e(f"v_lshrrev_b32 v{vQA}, 4, v{vL}")
        e(f"v_lshl_add_u32 v{vQA}, v{vQA}, 4, v{vT1}"); e(f"v_add_u32 v{vQA}, {base_sgpr_or_const}, v{vQA}")
    q_addr(L_QS)
    e("s_waitcnt vmcnt(16)")
    lck, lok = newl("Lck"), newl("Lok")
    e(f"{lck}:")
    e(f"v_readlane_b32 s{sT0}, v{vCK}, 0"); e(f"s_add_u32 s{sT1}, s{sX}, 1"); e(f"v_readlane_b32 s{sT2}, v{vCK}, s{sT1}")
    e(f"s_add_u32 s{sBUD}, s{sBUD}, 1")
    e(f"s_cmp_ge_u32 s{sT0}, 256"); e(f"s_cbranch_scc1 {lok}")
    e(f"s_cmp_gt_u32 s{sBUD}, 200000"); e(f"s_cbranch_scc1 {lok}")
    e(f"v_lshlrev_b32 v{vT1}, 2, v{vL}")
    e(f"buffer_load_dword v{vCK}, v{vT1}, {srd(rDBG)}, 0 offen sc1"); e("s_waitcnt vmcnt(0)"); e(f"s_branch {lck}")
    e(f"{lok}:")
    e(f"s_bcnt1_i32_b32 s{sT2}, s{sT2}"); e(f"s_sub_u32 s{sSLOW}, s{sT2}, 1")
    if force_slow: e(f"s_mov_b32 s{sSLOW}, 1")
    nstamp[0] = 4

    e("L_pair:")
    stamp(True)
    vQ, vD, vS, vPP, vBR = 72, 88, 100, 108, 112
    for s_ in range(4): e(f"ds_read_b128 {vr(vQ+4*s_,4)}, v{vQA} offset:{64*s_}")
    for i in range(32): e(f"v_mov_b32 v{vO+i}, 0")
    e("s_waitcnt lgkmcnt(0)")
    def sel(n):
        for i in range(4):
            d = vS + 4*(n & 1) + i
            e(f"v_cndmask_b32 v{d}, v{d}, v{vD+4*(n%3)+i}, s[{sQK+2*(n>>1)}:{sQK+2*(n>>1)+1}]")
    for n in range(16):
        for s_ in range(4):
            cc = "0" if s_ == 0 else vr(vD+4*(n%3),4)
            e(f"v_mfma_f32_16x16x32_bf16 {vr(vD+4*(n%3),4)}, {ar((n*4+s_)*4,4)}, {vr(vQ+4*s_,4)}, {cc}")
        if n >= 2: sel(n-2)
    sel(14); sel(15)
    RING = [72, 80, 88]
    vM, vLs, vA0, vA1 = 124, 125, 126, 127
    e("s_waitcnt vmcnt(16)")
    seq = [(2, d) for d in range(8)] + [(3, d) for d in range(8)]
    def ring_read(n):
        J, d = seq[n]
        if n == 8: e("s_waitcnt vmcnt(0)")
        a = vA0 + (n & 1)
        e(f"v_xor_b32 v{a}, {32*d}, v{vVA}")
        v_operand_reads(RING[n % 3], J, d, a)
    for n in range(3): ring_read(n)
    e(f"v_max3_f32 v{vM}, v{vS}, v{vS+1}, v{vS+2}"); e(f"v_max3_f32 v{vM}, v{vM}, v{vS+3}, v{vS+4}"); e(f"v_max3_f32 v{vM}, v{vM}, v{vS+5}, v{vS+6}")
    e(f"v_max_f32 v{vM}, v{vM}, v{vS+7}")
    for n in (2, 4, 8): e(f"v_max_f32_dpp v{vM}, v{vM}, v{vM} row_ror:{n} {DPPF}")
    e(f"v_mov_b32 v{vT0}, v{vM}"); e(f"v_permlane32_swap_b32 v{vM}, v{vT0}"); e(f"v_max_f32 v{vM}, v{vM}, v{vT0}")
    e(f"v_mov_b32 v{vT0}, v{vM}"); e(f"v_permlane16_swap_b32 v{vM}, v{vT0}"); e(f"v_max_f32 v{vM}, v{vM}, v{vT0}")
    e(f"v_mul_f32 v{vM}, s{sC}, v{vM}")
    for i in range(8): e(f"v_fma_f32 v{vS+i}, v{vS+i}, s{sC}, -v{vM}")
    for i in range(8): e(f"v_exp_f32 v{vS+i}, v{vS+i}")
    for i in range(4): e(f"v_cvt_pk_bf16_f32 v{vPP+i}, v{vS+2*i}, v{vS+2*i+1}")
    PJ = {0: vPP, 1: vBR, 2: vBR + 4, 3: vBR + 8}
    for J in (2, 1, 3):
        for i in range(4): e(f"v_mov_b32_dpp v{PJ[J]+i}, v{vPP+i} row_ror:{16-4*J} {DPPF}")
    extra = []
    extra.append(f"v_add_f32 v{vLs}, v{vS}, v{vS+1}")
    for i in range(2, 8): extra.append(f"v_add_f32 v{vLs}, v{vLs}, v{vS+i}")
    for n in (2, 4, 8): extra.append(f"v_add_f32_dpp v{vLs}, v{vLs}, v{vLs} row_ror:{n} {DPPF}")
    extra += [f"v_mov_b32 v{vT0}, v{vLs}", f"v_permlane32_swap_b32 v{vLs}, v{vT0}", f"v_add_f32 v{vLs}, v{vLs}, v{vT0}",
              f"v_mov_b32 v{vT0}, v{vLs}", f"v_permlane16_swap_b32 v{vLs}, v{vT0}", f"v_add_f32 v{vLs}, v{vLs}, v{vT0}"]
    for n in range(16):
        J, d = seq[n]
        e(f"v_smfmac_f32_16x16x64_bf16 {vr(vO+4*d,4)}, {vr(PJ[J-2],4)}, {vr(vV1+(J-2)*64+d*8,8)}, v{vIDX}")
        if extra: e(extra.pop(0))
        outstanding = min(16, n + 3) - (n + 1)
        e(f"s_waitcnt lgkmcnt({4*outstanding})")
        e(f"v_smfmac_f32_16x16x64_bf16 {vr(vO+4*d,4)}, {vr(PJ[J],4)}, {vr(RING[n%3],8)}, v{vIDX}")
        if n + 3 < 16: ring_read(n + 3)
    assert not extra
    stamp(True)
    e(f"v_lshlrev_b32 v{vT1}, 2, v{vL}"); e(f"s_lshl_b32 s{sT0}, s{sW}, 10"); e(f"s_add_u32 s{sT0}, s{sT0}, {L_OSC}"); e(f"v_add_u32 v{vT1}, s{sT0}, v{vT1}")
    e(f"v_and_b32 v{vT2}, 1, v{vL}"); e(f"v_lshlrev_b32 v{vT2}, 5, v{vT2}"); e(f"s_lshl_b32 s{sT0}, s{sW}, 3"); e(f"s_add_u32 s{sT0}, s{sT0}, {L_ST}"); e(f"v_add_u32 v{vT2}, s{sT0}, v{vT2}")
    e(f"s_mov_b64 exec, s[{sM16}:{sM16+1}]")
    e(f"ds_write_b64 v{vT2}, {vr(vM,2)}")
    for d in range(8):
        e(f"v_add_f32 v{vO+4*d}, v{vO+4*d}, v{vO+4*d+2}"); e(f"v_add_f32 v{vO+4*d+1}, v{vO+4*d+1}, v{vO+4*d+3}")
        e(f"ds_write2_b32 v{vT1}, v{vO+4*d}, v{vO+4*d+1} offset0:{16*d} offset1:{128+16*d}")
    e("s_mov_b64 exec, -1")
    e(f"v_lshlrev_b32 v{vT1}, 2, v{vL}"); e(f"s_lshl_b32 s{sT0}, s{sW}, 8"); e(f"v_add_u32 v{vA0}, s{sT0}, v{vT1}"); e(f"v_add_u32 v{vT1}, {L_OSC}, v{vA0}")
    e(f"s_lshr_b32 s{sT1}, s{sW}, 1"); e(f"s_lshl_b32 s{sT1}, s{sT1}, 5"); e(f"s_add_u32 s{sT0}, s{sT1}, {L_ST}"); e(f"v_mov_b32 v{vT2}, s{sT0}")
    e(f"s_lshl_b32 s{sOA}, s{sP}, 15"); e(f"s_add_u32 s{sOA}, s{sOA}, s{sG}"); e(f"s_lshl_b32 s{sT0}, s{sJ}, 10"); e(f"s_add_u32 s{sOA}, s{sOA}, s{sT0}")
    e(f"s_lshl_b32 s{sOB}, s{sP}, 9"); e(f"s_add_u32 s{sOB}, s{sOB}, s{sG}"); e(f"s_add_u32 s{sOB}, s{sOB}, {OFF_OS}")
    e(f"s_lshr_b32 s{sT0}, s{sJ}, 2"); e(f"s_lshl_b32 s{sT0}, s{sT0}, 6"); e(f"s_add_u32 s{sOB}, s{sOB}, s{sT0}"); e(f"s_add_u32 s{sOB}, s{sOB}, s{sT1}")
    e(f"s_lshl_b32 s{sT0}, s{sSP}, 3"); e(f"s_add_u32 s{sOB}, s{sOB}, s{sT0}")
    e(f"v_mov_b32 v{vA1}, 0")
    e("s_waitcnt lgkmcnt(0)"); e("s_barrier")
    e(f"ds_read_b128 {vr(72,4)}, v{vT2}"); e(f"ds_read_b128 {vr(76,4)}, v{vT2} offset:16")
    e(f"ds_read2st64_b32 {vr(80,2)}, v{vT1} offset0:0 offset1:4"); e(f"ds_read2st64_b32 {vr(82,2)}, v{vT1} offset0:8 offset1:12")
    e("s_waitcnt lgkmcnt(2)")
    def combine4(st, mo):
        e(f"v_max3_f32 v{mo}, v{st}, v{st+2}, v{st+4}"); e(f"v_max_f32 v{mo}, v{mo}, v{st+6}")
        for k in range(4): e(f"v_sub_f32 v{st+2*k}, v{st+2*k}, v{mo}")
        for k in range(4): e(f"v_exp_f32 v{st+2*k}, v{st+2*k}")
        e(f"v_mul_f32 v{mo+1}, v{st}, v{st+1}")
        for k in range(1, 4): e(f"v_fmac_f32 v{mo+1}, v{st+2*k}, v{st+2*k+1}")
    combine4(72, 84)
    e("s_waitcnt lgkmcnt(0)")
    e(f"v_mul_f32 v86, v72, v80")
    for k in range(1, 4): e(f"v_fmac_f32 v86, v{72+2*k}, v{80+k}")
    publish_intra([f"buffer_store_dword v86, v{vA0}, {srd(rWS)}, s{sOA} offen",
                   f"buffer_store_dwordx2 {vr(84,2)}, v{vA1}, {srd(rWS)}, s{sOB} offen"])
    stamp(True)

    def fold_store_addr(v):
        e(f"v_and_b32 v{v}, 15, v{vL}"); e(f"v_lshlrev_b32 v{v}, 6, v{v}"); e(f"v_lshrrev_b32 v{vT0}, 4, v{vL}"); e(f"v_lshl_add_u32 v{v}, v{vT0}, 4, v{v}")
    def bop_addr(v, base, pitch):
        e(f"v_and_b32 v{v}, 3, v{vL}"); e(f"v_mul_u32_u24 v{v}, {pitch}, v{v}"); e(f"v_lshrrev_b32 v{vT0}, 4, v{vL}"); e(f"v_lshl_add_u32 v{v}, v{vT0}, 4, v{v}")
        if base: e(f"v_add_u32 v{v}, {base}, v{v}")
    lS2 = newl("LnoS2")
    e(f"s_cmp_ge_u32 s{sJ}, 18"); e(f"s_cbranch_scc1 {lS2}")
    e(f"s_lshl_b32 s{sT0}, s{sKQ}, 2"); e(f"s_add_u32 s{sT0}, s{sT0}, s{sW}")
    e(f"s_lshl_b32 s{sOA}, s{sP}, 15"); e(f"s_add_u32 s{sOA}, s{sOA}, s{sG}"); e(f"s_lshl_b32 s{sT1}, s{sT0}, 12"); e(f"s_add_u32 s{sOA}, s{sOA}, s{sT1}")
    e(f"s_lshl_b32 s{sOB}, s{sP}, 9"); e(f"s_add_u32 s{sOB}, s{sOB}, s{sG}"); e(f"s_add_u32 s{sOB}, s{sOB}, {OFF_OS}"); e(f"s_lshl_b32 s{sT1}, s{sT0}, 6"); e(f"s_add_u32 s{sOB}, s{sOB}, s{sT1}")
    e(f"v_lshlrev_b32 v{vT1}, 4, v{vL}"); e(f"v_and_b32 v{vT2}, 32, v{vL}")
    e(f"v_lshlrev_b32 v120, 3, v{vL}"); e(f"s_mul_i32 s{sT1}, s{sW}, 544"); e(f"s_add_u32 s{sT1}, s{sT1}, {L_OB}"); e(f"v_add_u32 v120, s{sT1}, v120")
    bop_addr(121, L_OB, 544); fold_store_addr(122)
    e(f"s_mul_i32 s{sOC}, s{sP}, 147456"); e(f"s_add_u32 s{sOC}, s{sOC}, {OFF_P1}"); e(f"s_lshl_b32 s{sT0}, s{sCG}, 2"); e(f"s_add_u32 s{sT0}, s{sT0}, s{sW}")
    e(f"s_lshl_b32 s{sT0}, s{sT0}, 12"); e(f"s_add_u32 s{sOC}, s{sOC}, s{sT0}"); e(f"s_lshl_b32 s{sT0}, s{sX}, 1"); e(f"s_add_u32 s{sT0}, s{sT0}, s{sKQ}")
    e(f"s_lshl_b32 s{sT0}, s{sT0}, 8"); e(f"s_add_u32 s{sOC}, s{sOC}, s{sT0}")
    poll([f"buffer_load_dwordx4 {vr(40,4)}, v{vT2}, {srd(rWS)}, s{sOB} offen sc1",
          f"buffer_load_dwordx4 {vr(44,4)}, v{vT2}, {srd(rWS)}, s{sOB} offen offset:16 sc1"] +
         [f"buffer_load_dwordx4 {vr(48+4*k,4)}, v{vT1}, {srd(rWS)}, s{sOA} offen offset:{1024*k} sc1" for k in range(4)],
         [(40,4),(44,4)] + [(48+4*k,4) for k in range(4)])
    stamp(True)
    combine4(40, 64)
    e("v_rcp_f32 v65, v65")
    for i in range(4): e(f"v_mul_f32 v{66+i}, v40, v{48+i}")
    for k in range(1, 4):
        for i in range(4): e(f"v_fmac_f32 v{66+i}, v{40+2*k}, v{48+4*k+i}")
    for i in range(4): e(f"v_mul_f32 v{66+i}, v65, v{66+i}")
    e("v_cvt_pk_bf16_f32 v66, v66, v67"); e("v_cvt_pk_bf16_f32 v67, v68, v69")
    e(f"ds_write_b64 v120, {vr(66,2)}")
    e("s_waitcnt lgkmcnt(0)"); e("s_barrier")
    for s_ in range(8): e(f"ds_read_b128 {vr(72+4*s_,4)}, v121 offset:{64*s_}")
    for s_ in range(8):
        e(f"s_waitcnt lgkmcnt({7-s_})")
        e(f"v_mfma_f32_16x16x32_bf16 {vr(104,4)}, {vr(vWO+4*s_,4)}, {vr(72+4*s_,4)}, {'0' if s_ == 0 else vr(104,4)}")
    e(f"s_mov_b64 exec, s[{sM4}:{sM4+1}]")
    e(f"buffer_store_dwordx4 {vr(104,4)}, v122, {srd(rWS)}, s{sOC} offen sc1")
    e("s_mov_b64 exec, -1")
    e(f"{lS2}:")
    nstamp[0] += 0 if True else 0
    stamp(True)
    def stage_issue(rW, pitch, sbase):
        wsrc(124, pitch, vT1, vT2)
        e(f"s_mul_i32 s{sT0}, s{sW}, {48*pitch}"); e(f"s_add_u32 s{sT0}, s{sT0}, s{sbase}")
        e(f"s_mul_i32 s{sT1}, s{sW}, 6144"); e(f"s_add_u32 s{sT1}, s{sT1}, {L_STG}")
        for i in range(6):
            e(f"s_mov_b32 m0, s{sT1}")
            e(f"buffer_load_dwordx4 v{124+(i&1)}, {srd(rW)}, s{sT0} offen {WPOL} lds")
            if i < 5: e(f"s_add_u32 s{sT0}, s{sT0}, {8*pitch}"); e(f"s_add_u32 s{sT1}, s{sT1}, 1024")
    def stage_read(dst):
        e(f"s_lshl_b32 s{sT0}, s{sW}, 5"); e(f"v_xor_b32 v{vT1}, s{sT0}, v{vTR}"); e(f"v_add_u32 v{vT1}, {L_STG}, v{vT1}")
        e("s_waitcnt vmcnt(0)"); e("s_barrier")
        for s_ in range(6):
            for hf in range(2):
                e(f"ds_read_b64_tr_b16 {vr(dst+4*s_+2*hf,2)}, v{vT1} offset:{s_*4096+hf*512}")
        e("s_waitcnt lgkmcnt(0)")
    vW1, vW3, vXO, vSA, vDG = 40, 64, 88, 112, 120
    lM = newl("LnoM")
    e(f"s_cmp_ge_u32 s{sJ}, 27"); e(f"s_cbranch_scc1 {lM}")
    e(f"s_mul_i32 s{sOA}, s{sKQ}, {192*9216}"); e(f"s_mul_i32 s{sT0}, s{sX}, 1152"); e(f"s_add_u32 s{sOA}, s{sOA}, s{sT0}"); e(f"s_lshl_b32 s{sT0}, s{sCG}, 7"); e(f"s_add_u32 s{sOA}, s{sOA}, s{sT0}")
    stage_issue(rW1, 9216, sOA); stage_read(vW1); e("s_barrier")
    stage_issue(rW3, 9216, sOA); stage_read(vW3); e("s_barrier")
    e(f"s_mul_i32 s{sOA}, s{sX}, 3"); e(f"s_add_u32 s{sOA}, s{sOA}, s{sKQ}"); e(f"s_mul_i32 s{sOA}, s{sOA}, {192*1152}"); e(f"s_lshl_b32 s{sT0}, s{sCG}, 7"); e(f"s_add_u32 s{sOA}, s{sOA}, s{sT0}")
    stage_issue(rW2, 1152, sOA)
    e(f"{lM}:")
    stamp(True)
    def reducer(R, off, psz, final_ok):
        l = newl("LnoR")
        e(f"s_cmp_lt_u32 s{sJ}, 23"); e(f"s_cbranch_scc1 {l}")
        if final_ok:
            e(f"s_mul_i32 s{sT0}, s{sP}, s{sX}"); e(f"s_cmp_lg_u32 s{sT0}, 0"); e(f"s_cbranch_scc1 {l}")
        e(f"s_sub_u32 s{sT2}, s{sJ}, 23"); e(f"s_lshl_b32 s{sT2}, s{sT2}, 2"); e(f"s_add_u32 s{sT2}, s{sT2}, s{sW}")
        e(f"s_mul_i32 s{sOA}, s{sP}, {psz}"); e(f"s_add_u32 s{sOA}, s{sOA}, {off}"); e(f"s_mul_i32 s{sT0}, s{sT2}, {R*256}"); e(f"s_add_u32 s{sOA}, s{sOA}, s{sT0}")
        e(f"s_add_u32 s{sOD}, s{sOA}, 4096")
        e(f"s_mul_i32 s{sOB}, s{sXI}, 4608"); e(f"s_add_u32 s{sOB}, s{sOB}, s{sG}"); e(f"s_add_u32 s{sOB}, s{sOB}, {OFF_X}"); e(f"s_lshl_b32 s{sT0}, s{sT2}, 5"); e(f"s_add_u32 s{sOB}, s{sOB}, s{sT0}")
        e(f"s_lshl_b32 s{sOC}, s{sXI}, 11"); e(f"s_add_u32 s{sOC}, s{sOC}, s{sG}"); e(f"s_add_u32 s{sOC}, s{sOC}, {OFF_XS}"); e(f"s_lshl_b32 s{sT1}, s{sT2}, 3"); e(f"s_add_u32 s{sOC}, s{sOC}, s{sT1}")
        vG = 88
        e(f"v_lshlrev_b32 v{vT1}, 4, v{vL}")
        e(f"v_bfe_u32 v{vT2}, v{vL}, 2, 2"); e(f"v_mul_u32_u24 v112, 1152, v{vT2}"); e(f"v_and_b32 v113, 3, v{vL}"); e(f"v_lshl_add_u32 v112, v113, 3, v112")
        e(f"v_lshlrev_b32 v113, 9, v{vT2}"); e(f"v_lshrrev_b32 v{vT2}, 5, v{vL}"); e(f"v_lshl_add_u32 v113, v{vT2}, 2, v113")
        n = R // 4
        poll([f"buffer_load_dwordx4 {vr(vG+4*k,4)}, v{vT1}, {srd(rWS)}, s{sOA if k < 4 else sOD} offen offset:{1024*(k&3)} sc1" for k in range(n)],
             [(vG+4*k, 4) for k in range(n)])
        stamp(True)
        for k in range(1, n):
            for i in range(4): e(f"v_add_f32 v{vG+i}, v{vG+i}, v{vG+4*k+i}")
        e(f"v_permlane32_swap_b32 v{vG}, v{vG+2}"); e(f"v_permlane32_swap_b32 v{vG+1}, v{vG+3}")
        e(f"v_add_f32 v{vG}, v{vG}, v{vG+2}"); e(f"v_add_f32 v{vG+1}, v{vG+1}, v{vG+3}")
        e(f"v_permlane16_swap_b32 v{vG}, v{vG+1}"); e(f"v_add_f32 v{vG}, v{vG}, v{vG+1}")
        e(f"v_add_f32 v{vG}, v{vG}, v{vRES}")
        e(f"v_cvt_pk_bf16_f32 v{vG}, v{vG}, v{vG}"); e(f"v_and_b32 v{vRES}, 0xffff0000, v{vG}")
        e(f"v_mov_b32 v{vG+1}, v{vRES}"); e(f"v_mov_b32 v{vG+2}, v{vRES}")
        e(f"v_permlane16_swap_b32 v{vG+1}, v{vG+2}"); e(f"v_cvt_pk_bf16_f32 v{vG+4}, v{vG+1}, v{vG+2}")
        e(f"v_mov_b32 v{vG+5}, v{vG+4}"); e(f"v_permlane32_swap_b32 v{vG+4}, v{vG+5}")
        if final_ok:
            lf = newl("Lfin")
            e(f"s_cmp_eq_u32 s{sP}, 0"); e(f"s_cbranch_scc1 {lf}")
            e(f"buffer_store_dwordx2 {vr(vG+4,2)}, v112, {srd(rOUT)}, s{sT0} offen")
            e("s_branch L_fin")
            e(f"{lf}:")
        e(f"v_mul_f32 v{vG+7}, v{vRES}, v{vRES}"); e(f"v_mov_b32 v{vG+6}, v{vRES}")
        e(f"v_permlane32_swap_b32 v{vG+6}, v{vG+7}"); e(f"v_add_f32 v{vG+6}, v{vG+6}, v{vG+7}")
        e(f"v_add_f32_dpp v{vG+6}, v{vG+6}, v{vG+6} quad_perm:[1,0,3,2] {DPPF}"); e(f"v_add_f32_dpp v{vG+6}, v{vG+6}, v{vG+6} quad_perm:[2,3,0,1] {DPPF}")
        e(f"v_mov_b32 v{vG+7}, v{vG+6}"); e(f"v_permlane16_swap_b32 v{vG+6}, v{vG+7}"); e(f"v_add_f32 v{vG+6}, v{vG+6}, v{vG+7}")
        publish_intra([f"buffer_store_dwordx2 {vr(vG+4,2)}, v112, {srd(rWS)}, s{sOB} offen",
                       f"buffer_store_dword v{vG+6}, v113, {srd(rWS)}, s{sOC} offen"])
        e(f"{l}:")
        stamp(True)
    reducer(16, OFF_P1, 147456, False)
    def ln_gemv(mats, skq, store_off_emit):
        e(f"s_mul_i32 s{sOA}, s{sXI}, 4608"); e(f"s_add_u32 s{sOA}, s{sOA}, s{sG}"); e(f"s_add_u32 s{sOA}, s{sOA}, {OFF_X}"); e(f"s_mul_i32 s{sT0}, s{skq}, 384"); e(f"s_add_u32 s{sOA}, s{sOA}, s{sT0}")
        e(f"s_lshl_b32 s{sOB}, s{sXI}, 11"); e(f"s_add_u32 s{sOB}, s{sOB}, s{sG}"); e(f"s_add_u32 s{sOB}, s{sOB}, {OFF_XS}")
        store_off_emit()
        bop_addr(vT1, 0, 1152)
        e(f"v_and_b32 v{vT2}, 3, v{vL}"); e(f"v_lshlrev_b32 v{vT2}, 9, v{vT2}"); e(f"v_lshrrev_b32 v{vT0}, 2, v{vL}"); e(f"v_lshl_add_u32 v{vT2}, v{vT0}, 4, v{vT2}")
        e(f"v_and_b32 v{vT0}, 15, v{vL}"); e(f"v_cmp_eq_u32 vcc, 4, v{vT0}"); e(f"v_mov_b32 v{vT0}, 0x3f803f80"); e(f"v_cndmask_b32 v{vXO}, 0, v{vT0}, vcc")
        for i in range(1, 24): e(f"v_mov_b32 v{vXO+i}, v{vXO}")
        for i in range(4): e(f"v_mov_b32 v{vSA+4+i}, 0")
        poll([f"s_mov_b64 exec, s[{sM4}:{sM4+1}]"] +
             [f"buffer_load_dwordx4 {vr(vXO+4*k,4)}, v{vT1}, {srd(rWS)}, s{sOA} offen offset:{64*k} sc1" for k in range(6)] +
             ["s_mov_b64 exec, 0xff", f"buffer_load_dwordx4 {vr(vSA+4,4)}, v{vT2}, {srd(rWS)}, s{sOB} offen offset:256 sc1",
              "s_mov_b64 exec, -1", f"buffer_load_dwordx4 {vr(vSA,4)}, v{vT2}, {srd(rWS)}, s{sOB} offen sc1"],
             [(vXO+4*k, 4) for k in range(6)] + [(vSA+4, 4), (vSA, 4)])
        stamp(True)
        st = [f"v_add_f32 v{vSA}, v{vSA}, v{vSA+2}", f"v_add_f32 v{vSA+1}, v{vSA+1}, v{vSA+3}", f"v_add_f32 v{vSA+4}, v{vSA+4}, v{vSA+6}", f"v_add_f32 v{vSA+5}, v{vSA+5}, v{vSA+7}",
              f"v_add_f32 v{vSA}, v{vSA}, v{vSA+4}", f"v_add_f32 v{vSA+1}, v{vSA+1}, v{vSA+5}",
              f"v_permlane32_swap_b32 v{vSA}, v{vSA+1}", f"v_add_f32 v{vSA}, v{vSA}, v{vSA+1}",
              f"v_add_f32_dpp v{vSA}, v{vSA}, v{vSA} row_ror:4 {DPPF}", f"v_add_f32_dpp v{vSA}, v{vSA}, v{vSA} row_ror:8 {DPPF}",
              f"v_mov_b32 v{vSA+1}, v{vSA}", f"v_permlane16_swap_b32 v{vSA}, v{vSA+1}", f"v_add_f32 v{vSA}, v{vSA}, v{vSA+1}",
              f"v_mov_b32 v{vSA+1}, v{vSA}", f"v_permlane32_swap_b32 v{vSA}, v{vSA+1}",
              f"v_mul_f32 v{vSA}, {f2u(-1/576)}, v{vSA}", f"v_mul_f32 v{vSA+1}, {f2u(1/576)}, v{vSA+1}",
              f"v_fma_f32 v{vSA+1}, -v{vSA}, v{vSA}, v{vSA+1}", f"v_max_f32 v{vSA+1}, 0, v{vSA+1}", f"v_add_f32 v{vSA+1}, {f2u(1e-5)}, v{vSA+1}",
              f"v_rsq_f32 v{vSA+1}, v{vSA+1}"]
        per = -(-len(st) // (6 * len(mats)))
        for s_ in range(6):
            for mi, wb in enumerate(mats):
                e(f"v_mfma_f32_16x16x32_bf16 {vr(vDG+4*mi,4)}, {vr(wb+4*s_,4)}, {vr(vXO+4*s_,4)}, {'0' if s_ == 0 else vr(vDG+4*mi,4)}")
                for _ in range(per):
                    if st: e(st.pop(0))
        while st: e(st.pop(0))
        fold_store_addr(vT1)
        for mi in range(len(mats)):
            for i in range(4): e(f"v_fmac_f32_dpp v{vDG+4*mi+i}, v{vDG+4*mi+i}, v{vSA} row_newbcast:4 {DPPF}")
            for i in range(4): e(f"v_mul_f32 v{vDG+4*mi+i}, v{vDG+4*mi+i}, v{vSA+1}")
        e(f"s_mov_b64 exec, s[{sM4}:{sM4+1}]")
        publish_intra([f"buffer_store_dwordx4 {vr(vDG+4*mi,4)}, v{vT1}, {srd(rWS)}, s{sOC+mi} offen" for mi in range(len(mats))])
        e("s_mov_b64 exec, -1")
    lM2 = newl("LnoS45")
    e(f"s_cmp_ge_u32 s{sJ}, 27"); e(f"s_cbranch_scc1 {lM2}")
    def s4_off():
        e(f"s_mul_i32 s{sOC}, s{sP}, 55296"); e(f"s_add_u32 s{sOC}, s{sOC}, s{sG}"); e(f"s_add_u32 s{sOC}, s{sOC}, {OFF_GU}")
        e(f"s_mul_i32 s{sT0}, s{sKQ}, 18432"); e(f"s_add_u32 s{sOC}, s{sOC}, s{sT0}"); e(f"s_lshl_b32 s{sT0}, s{sCG}, 2"); e(f"s_add_u32 s{sT0}, s{sT0}, s{sW}")
        e(f"s_lshl_b32 s{sT0}, s{sT0}, 8"); e(f"s_add_u32 s{sOC}, s{sOC}, s{sT0}"); e(f"s_add_u32 s{sOD}, s{sOC}, 9216")
    ln_gemv([vW1, vW3], sKQ, s4_off)
    stamp(True)
    vW2 = 40
    stage_read(vW2)
    e(f"s_mul_i32 s{sOA}, s{sP}, 55296"); e(f"s_add_u32 s{sOA}, s{sOA}, s{sG}"); e(f"s_add_u32 s{sOA}, s{sOA}, {OFF_GU}"); e(f"s_mul_i32 s{sT0}, s{sKQ}, 3072"); e(f"s_add_u32 s{sOA}, s{sOA}, s{sT0}")
    e(f"s_lshl_b32 s{sT0}, s{sW}, 10"); e(f"s_add_u32 s{sOA}, s{sOA}, s{sT0}")
    for k in range(6): e(f"s_add_u32 s{90+k}, s{sOA}, {k*9216}")
    e(f"v_lshlrev_b32 v{vT1}, 4, v{vL}")
    e(f"v_bfe_u32 v{vT2}, v{vL}, 2, 2"); e(f"v_mul_u32_u24 v120, 416, v{vT2}"); e(f"v_lshrrev_b32 v{vT2}, 4, v{vL}"); e(f"v_lshl_add_u32 v120, v{vT2}, 5, v120")
    e(f"v_and_b32 v{vT2}, 3, v{vL}"); e(f"v_lshl_add_u32 v120, v{vT2}, 3, v120"); e(f"s_lshl_b32 s{sT0}, s{sW}, 7"); e(f"s_add_u32 s{sT0}, s{sT0}, {L_HB}"); e(f"v_add_u32 v120, s{sT0}, v120")
    bop_addr(121, L_HB, 416); fold_store_addr(122)
    e(f"s_mul_i32 s{sOC}, s{sP}, 221184"); e(f"s_add_u32 s{sOC}, s{sOC}, {OFF_P2}"); e(f"s_lshl_b32 s{sT0}, s{sCG}, 2"); e(f"s_add_u32 s{sT0}, s{sT0}, s{sW}")
    e(f"s_mul_i32 s{sT0}, s{sT0}, 6144"); e(f"s_add_u32 s{sOC}, s{sOC}, s{sT0}"); e(f"s_mul_i32 s{sT0}, s{sX}, 3"); e(f"s_add_u32 s{sT0}, s{sT0}, s{sKQ}")
    e(f"s_lshl_b32 s{sT0}, s{sT0}, 8"); e(f"s_add_u32 s{sOC}, s{sOC}, s{sT0}")
    l3 = newl("Lw3")
    e(f"s_cmp_eq_u32 s{sW}, 3"); e(f"s_cbranch_scc1 {l3}")
    poll([f"buffer_load_dwordx4 {vr(64+4*k,4)}, v{vT1}, {srd(rWS)}, s{90+k} offen sc1" for k in range(6)], [(64+4*k, 4) for k in range(6)])
    stamp(True)
    for i in range(4): e(f"v_add_f32 v{64+i}, v{64+i}, v{72+i}")
    for i in range(4): e(f"v_add_f32 v{64+i}, v{64+i}, v{80+i}")
    for i in range(4): e(f"v_mul_f32 v{88+i}, {f2u(-LOG2E)}, v{64+i}")
    for i in range(4): e(f"v_exp_f32 v{88+i}, v{88+i}")
    for i in range(4): e(f"v_add_f32 v{68+i}, v{68+i}, v{76+i}")
    for i in range(4): e(f"v_add_f32 v{88+i}, 1.0, v{88+i}")
    for i in range(4): e(f"v_rcp_f32 v{88+i}, v{88+i}")
    for i in range(4): e(f"v_add_f32 v{68+i}, v{68+i}, v{84+i}")
    for i in range(4): e(f"v_mul_f32 v{64+i}, v{64+i}, v{68+i}")
    for i in range(4): e(f"v_mul_f32 v{64+i}, v{64+i}, v{88+i}")
    e("v_cvt_pk_bf16_f32 v64, v64, v65"); e("v_cvt_pk_bf16_f32 v65, v66, v67")
    e(f"ds_write_b64 v120, {vr(64,2)}")
    e("s_waitcnt lgkmcnt(0)")
    e(f"{l3}:")
    e("s_barrier")
    for s_ in range(6): e(f"ds_read_b128 {vr(64+4*s_,4)}, v121 offset:{64*s_}")
    for s_ in range(6):
        e(f"s_waitcnt lgkmcnt({5-s_})")
        e(f"v_mfma_f32_16x16x32_bf16 {vr(104,4)}, {vr(vW2+4*s_,4)}, {vr(64+4*s_,4)}, {'0' if s_ == 0 else vr(104,4)}")
    e(f"s_mov_b64 exec, s[{sM4}:{sM4+1}]")
    e(f"buffer_store_dwordx4 {vr(104,4)}, v122, {srd(rWS)}, s{sOC} offen sc1")
    e("s_mov_b64 exec, -1")
    e(f"{lM2}:")
    stamp(True)
    e(f"s_add_u32 s{sXI}, s{sXI}, 1")
    l7 = newl("LnoW7")
    e(f"s_cmp_lg_u32 s{sP}, 0"); e(f"s_cbranch_scc1 {l7}")
    e(f"s_cmp_ge_u32 s{sJ}, 24"); e(f"s_cbranch_scc1 {l7}")
    e(f"s_lshr_b32 s{sOD}, s{sJ}, 3"); e(f"s_mul_i32 s{sOA}, s{sOD}, {192*8192}"); e(f"s_lshl_b32 s{sT0}, s{sX}, 10"); e(f"s_add_u32 s{sOA}, s{sOA}, s{sT0}")
    e(f"s_and_b32 s{sT0}, s{sJ}, 7"); e(f"s_lshl_b32 s{sT0}, s{sT0}, 7"); e(f"s_add_u32 s{sOA}, s{sOA}, s{sT0}")
    stage_issue(rWQ, 8192, sOA)
    e(f"{l7}:")
    reducer(24, OFF_P2, 221184, True)
    e(f"s_cmp_lg_u32 s{sP}, 0"); e("s_cbranch_scc1 L_fin")
    l7 = newl("LnoS7")
    e(f"s_cmp_ge_u32 s{sJ}, 24"); e(f"s_cbranch_scc1 {l7}")
    stage_read(vW1)
    e(f"s_lshr_b32 s{sT3}, s{sJ}, 3")
    def s7_off():
        e(f"s_lshl_b32 s{sOC}, s{sJ}, 2"); e(f"s_add_u32 s{sOC}, s{sOC}, s{sW}"); e(f"s_lshl_b32 s{sOC}, s{sOC}, 8"); e(f"s_add_u32 s{sOC}, s{sOC}, s{sG}"); e(f"s_add_u32 s{sOC}, s{sOC}, {OFF_QP}")
    ln_gemv([vW1], sT3, s7_off)
    e(f"{l7}:")
    stamp(True)
    e(f"s_add_u32 s{sXI}, s{sXI}, 1")
    e(f"s_lshl_b32 s{sOA}, s{sHL}, 12"); e(f"s_add_u32 s{sOA}, s{sOA}, s{sG}"); e(f"s_add_u32 s{sOA}, s{sOA}, {OFF_QP}"); e(f"s_lshl_b32 s{sT0}, s{sB}, 6"); e(f"s_add_u32 s{sOA}, s{sOA}, s{sT0}")
    e(f"s_add_u32 s{sOB}, s{sOA}, 8192"); e(f"s_add_u32 s{sOC}, s{sOA}, 16384")
    e(f"v_lshrrev_b32 v{vT1}, 2, v{vL}"); e(f"v_lshlrev_b32 v{vT1}, 8, v{vT1}"); e(f"v_and_b32 v{vT0}, 3, v{vL}"); e(f"v_lshl_add_u32 v{vT1}, v{vT0}, 4, v{vT1}")
    e(f"s_mul_i32 s{sT0}, s{sW}, 576"); e(f"s_add_u32 s{sT0}, s{sT0}, {L_QS}")
    e(f"v_lshrrev_b32 v120, 5, v{vL}"); e(f"v_mul_u32_u24 v120, 288, v120"); e(f"v_and_b32 v{vT0}, 31, v{vL}"); e(f"v_lshl_add_u32 v120, v{vT0}, 3, v120"); e(f"v_add_u32 v120, s{sT0}, v120")
    e(f"v_mov_b32 v121, v{vT1}")
    q_addr(f"s{sT0}")
    e(f"s_mov_b32 s{sP}, 1")
    poll([f"buffer_load_dwordx4 {vr(72+4*k,4)}, v121, {srd(rWS)}, s{sOA+k} offen sc1" for k in range(3)], [(72+4*k, 4) for k in range(3)])
    for i in range(4): e(f"v_add_f32 v{72+i}, v{72+i}, v{76+i}")
    for i in range(4): e(f"v_add_f32 v{72+i}, v{72+i}, v{80+i}")
    e("v_cvt_pk_bf16_f32 v72, v72, v73"); e("v_cvt_pk_bf16_f32 v73, v74, v75")
    e(f"ds_write_b64 v120, {vr(72,2)}")
    e("s_waitcnt lgkmcnt(0)")
    e("s_branch L_pair")
    e("L_fin:")
    if prof:
        e(f"s_memrealtime s[{sTM}:{sTM+1}]"); e("s_waitcnt lgkmcnt(0)"); e(f"v_writelane_b32 v{vST}, s{sTM}, 63")
        e(f"v_writelane_b32 v{vST}, s{sBUD}, 62"); e(f"v_writelane_b32 v{vST}, s{sSLOW}, 61")
        e(f"s_lshl_b32 s{sT0}, s2, 2"); e(f"s_add_u32 s{sT0}, s{sT0}, s{sW}"); e(f"s_lshl_b32 s{sT0}, s{sT0}, 8"); e(f"s_add_u32 s{sT0}, s{sT0}, {OFF_STAMP}")
        e(f"v_lshlrev_b32 v{vT1}, 2, v{vL}")
        e(f"buffer_store_dword v{vST}, v{vT1}, {srd(rWS)}, s{sT0} offen")
    e("s_endpgm")
    for ls, lb, stores in slow_blocks:
        e(f"{ls}:")
        for s_ in stores: e(s_ + " sc1")
        e(f"s_branch {lb}")
    e("L_end:")
    e("s_endpgm")
    e('.section .rodata,"a"'); e(".p2align 6"); e(f".amdhsa_kernel {NAME}")
    e(".amdhsa_next_free_vgpr 512"); e(".amdhsa_next_free_sgpr 102"); e(".amdhsa_accum_offset 256")
    e(".amdhsa_group_segment_fixed_size 0"); e(".amdhsa_kernarg_size 96"); e(".amdhsa_user_sgpr_count 2")
    e(".amdhsa_user_sgpr_kernarg_segment_ptr 1"); e(".amdhsa_system_sgpr_workgroup_id_x 1"); e(".end_amdhsa_kernel")
    return pre + A.finish()
if __name__ == "__main__":
    out = sys.argv[1] if len(sys.argv) > 1 else "k.s"
    open(out, "w").write(gen(prof=("prof" in sys.argv)))
```
